```python
import torch

def _softmax(x, axis=-1):
    return torch.softmax(x, dim=axis)

def _gelu(x):
    return torch.nn.functional.gelu(x, approximate='tanh')

def _silu(x):
    return torch.nn.functional.silu(x)

def _sigmoid(x):
    return torch.sigmoid(x)

def _layernorm(x, axis=-1, eps=1e-05):
    m = x.mean(dim=axis, keepdim=True)
    v = x.var(dim=axis, keepdim=True, unbiased=False)
    return (x - m) / torch.sqrt(v + eps)

def _scatter_add(tgt, idx, src, axis=0):
    return tgt.clone().index_add_(axis, idx, src)

def _segment_sum(src, seg, n):
    out = torch.zeros((n,) + src.shape[1:], dtype=src.dtype)
    return out.index_add_(0, seg, src)

def _pad(x, pw):
    flat = tuple((v for pair in reversed(pw) for v in pair))
    return torch.nn.functional.pad(x, flat)
kernel_name = 'standalone__kv_cache_quant_pre_rope_vs_post_rope__prompt'

def setup_inputs():

    _w = lambda a: (lambda t: t.to(torch.bfloat16) if t.is_floating_point() else t)(torch.as_tensor(a))
    B, Sq, Skv = (1, 2048, 2048)
    H, Dh0 = (8, 256)
    G = 64 if 64 > 0 else Dh0
    G = max(2, G // 2 * 2)
    Dh = max(G, Dh0 // G * G)
    Skv = max(Skv, Sq)
    ng = Dh // G
    bits = 8 if 8 > 1 else 4
    bits = max(2, min(8, bits))
    qmax = (1 << bits) - 1
    half = Dh // 2
    inv = 1.0 / 10000.0 ** (torch.arange(half) / max(1, half))
    ang_k = torch.arange(Skv)[:, None] * inv[None, :]
    ang_q = torch.arange(Skv - Sq, Skv)[:, None] * inv[None, :]
    kc = torch.cat([torch.cos(ang_k), torch.cos(ang_k)], dim=-1)
    ks = torch.cat([torch.sin(ang_k), torch.sin(ang_k)], dim=-1)
    qc = torch.cat([torch.cos(ang_q), torch.cos(ang_q)], dim=-1)
    qs = torch.cat([torch.sin(ang_q), torch.sin(ang_q)], dim=-1)
    qk_i = torch.randint(0, qmax + 1, (B, H, Skv, Dh)).to(torch.int32)
    qv_i = torch.randint(0, qmax + 1, (B, H, Skv, Dh)).to(torch.int32)
    ksc = torch.abs((lambda *s: torch.randn(*s, dtype=torch.bfloat16) * 0.05)(B, H, Skv, ng)) * 0.1 + 0.01
    kzp = torch.full((B, H, Skv, ng), qmax / 2.0)
    vsc = torch.abs((lambda *s: torch.randn(*s, dtype=torch.bfloat16) * 0.05)(B, H, Skv, ng)) * 0.1 + 0.01
    vzp = torch.full((B, H, Skv, ng), qmax / 2.0)
    return {'q': _w((lambda *s: torch.randn(*s, dtype=torch.bfloat16) * 0.8)(B, H, Sq, Dh) * 0.5), 'qk': _w(qk_i), 'k_scales': _w(ksc), 'k_zeros': _w(kzp), 'qv': _w(qv_i), 'v_scales': _w(vsc), 'v_zeros': _w(vzp), 'q_cos': _w(qc), 'q_sin': _w(qs), 'k_cos': _w(kc), 'k_sin': _w(ks)}

def reference(q, qk, k_scales, k_zeros, qv, v_scales, v_zeros, q_cos, q_sin, k_cos, k_sin):
    B, H, Sq, Dh = q.shape
    ng = k_scales.shape[-1]
    G = Dh // ng
    half = Dh // 2
    ks = (lambda x, n, axis: torch.repeat_interleave(x, n, dim=axis))(k_scales, G, axis=-1)
    kz = (lambda x, n, axis: torch.repeat_interleave(x, n, dim=axis))(k_zeros, G, axis=-1)
    k = ((lambda x, dt: x.to(dt))(qk, q.dtype) - kz) * ks
    vs = (lambda x, n, axis: torch.repeat_interleave(x, n, dim=axis))(v_scales, G, axis=-1)
    vz = (lambda x, n, axis: torch.repeat_interleave(x, n, dim=axis))(v_zeros, G, axis=-1)
    v = ((lambda x, dt: x.to(dt))(qv, q.dtype) - vz) * vs
    k1 = k[..., :half].clone()
    k2 = k[..., half:].clone()
    krh = torch.concatenate([-k2, k1], axis=-1)
    kr = k * k_cos[None, None, :, :] + krh * k_sin[None, None, :, :]
    q1 = q[..., :half].clone()
    q2 = q[..., half:].clone()
    qrh = torch.concatenate([-q2, q1], axis=-1)
    qr = q * q_cos[None, None, :, :] + qrh * q_sin[None, None, :, :]
    logits = torch.einsum('bhqd,bhkd->bhqk', qr, kr) * float(Dh) ** (-0.5)
    attn = _softmax(logits, axis=-1)
    out = torch.einsum('bhqk,bhkd->bhqd', attn, v)
    return out
```

```python
import struct, sys, math

NAME = "standalone__kv_cache_quant_pre_rope_vs_post_rope__prompt"
HEADER = open("cdna_kernels/%s.s.ref" % NAME).read().split("; Override launch")[0]


def f2u(x):
    return struct.unpack("<I", struct.pack("<f", x))[0]


class Asm:
    def __init__(self):
        self.L = []
        self.vq = []

    def __call__(self, s):
        self.L.append("    " + s)

    def label(self, s):
        self.L.append(s + ":")

    def raw(self, s):
        self.L.append(s)

    def vm(self, s, tag):
        self(s)
        self.vq.append(tag)
        assert len(self.vq) <= 63, "vmcnt overflow"

    def wait_vm(self, tag, extra=""):
        if tag not in self.vq:
            if extra:
                self("s_waitcnt " + extra)
            return
        i = len(self.vq) - 1 - self.vq[::-1].index(tag)
        n = len(self.vq) - 1 - i
        self("s_waitcnt vmcnt(%d)%s" % (n, (" " + extra) if extra else ""))
        self.vq = self.vq[i + 1:]

    def wait_vm_all(self):
        self("s_waitcnt vmcnt(0)")
        self.vq = []

    def text(self):
        return "\n".join(self.L) + "\n"


def vr(b, n=4):
    return "v[%d:%d]" % (b, b + n - 1) if n > 1 else "v%d" % b


def ar(b, n=4):
    return "a[%d:%d]" % (b, b + n - 1) if n > 1 else "a%d" % b


def srd(A, d, lo, hi, nbytes):
    A("s_mov_b32 s%d, s%d" % (d, lo))
    A("s_and_b32 s%d, s%d, 0xffff" % (d + 1, hi))
    A("s_mov_b32 s%d, 0x%x" % (d + 2, nbytes))
    A("s_mov_b32 s%d, 0x20000" % (d + 3))


def kdesc(A, name, nvgpr, accum, nsgpr=96):
    A.raw(".amdhsa_kernel %s" % name)
    A.raw("  .amdhsa_next_free_vgpr %d" % nvgpr)
    A.raw("  .amdhsa_next_free_sgpr %d" % nsgpr)
    A.raw("  .amdhsa_accum_offset %d" % accum)
    A.raw("  .amdhsa_group_segment_fixed_size 0")
    A.raw("  .amdhsa_kernarg_size 112")
    A.raw("  .amdhsa_user_sgpr_count 2")
    A.raw("  .amdhsa_user_sgpr_kernarg_segment_ptr 1")
    A.raw("  .amdhsa_system_sgpr_workgroup_id_x 1")
    A.raw("  .amdhsa_float_denorm_mode_32 3")
    A.raw(".end_amdhsa_kernel")


SCALE = math.log2(math.e) / 16.0


def gen_pre(A, name, P):
    A.raw(".globl %s" % name)
    A.raw(".p2align 8")
    A.raw(".type %s,@function" % name)
    A.label(name)
    A("s_cmp_ge_u32 s2, 512")
    A("s_cbranch_scc1 L_pre_done")
    A("s_load_dwordx4 s[4:7], s[0:1], 8")
    A("s_load_dwordx4 s[8:11], s[0:1], 24")
    A("s_load_dwordx4 s[12:15], s[0:1], 40")
    A("s_load_dwordx4 s[16:19], s[0:1], 72")
    A("s_load_dwordx2 s[20:21], s[0:1], 104")
    A("v_lshrrev_b32 v1, 6, v0")
    A("v_and_b32 v0, 63, v0")
    A("v_readfirstlane_b32 s22, v1")
    if P.get("pre_map", 0) == 0:
        A("s_and_b32 s23, s2, 7")
        A("s_lshr_b32 s24, s2, 3")
    else:
        A("s_lshr_b32 s23, s2, 6")
        A("s_and_b32 s24, s2, 63")
    A("s_lshl_b32 s24, s24, 1")
    A("s_lshr_b32 s25, s22, 1")
    A("s_add_u32 s24, s24, s25")
    A("s_waitcnt lgkmcnt(0)")
    srd(A, 44, 20, 21, 16 << 20)
    A("s_bitcmp1_b32 s22, 0")
    A("s_cbranch_scc1 L_pre_v")

    srd(A, 28, 4, 5, 16 << 20)
    srd(A, 32, 16, 17, 1 << 20)
    srd(A, 36, 18, 19, 1 << 20)
    srd(A, 40, 6, 7, 128 << 10)
    srd(A, 48, 8, 9, 128 << 10)
    A("v_lshrrev_b32 v1, 2, v0")
    A("v_and_b32 v2, 3, v0")
    A("s_lshl_b32 s26, s24, 4")
    A("v_add_u32 v3, s26, v1")
    A("s_lshl_b32 s27, s23, 11")
    A("v_add_u32 v4, s27, v3")
    A("v_lshlrev_b32 v5, 10, v4")
    A("v_lshl_add_u32 v5, v2, 5, v5")
    A("v_lshlrev_b32 v6, 9, v3")
    A("v_lshl_add_u32 v6, v2, 4, v6")
    A("v_lshlrev_b32 v7, 3, v4")
    X, C, S = 16, 80, 112
    A.vm("buffer_load_dwordx2 v[8:9], v7, s[40:43], 0 offen", "sc")
    A.vm("buffer_load_dwordx2 v[10:11], v7, s[48:51], 0 offen", "zr")
    order = [0, 4, 1, 5, 2, 6, 3, 7]
    for ds in order:
        A.vm("buffer_load_dwordx4 %s, v5, s[28:31], 0 offen offset:%d" % (vr(X + 8 * ds), 128 * ds), ("x", ds, 0))
        A.vm("buffer_load_dwordx4 %s, v5, s[28:31], 0 offen offset:%d" % (vr(X + 8 * ds + 4), 128 * ds + 16), ("x", ds, 1))
        A.vm("buffer_load_dwordx4 %s, v6, s[32:35], 0 offen offset:%d" % (vr(C + 4 * ds), 64 * ds), ("c", ds))
        A.vm("buffer_load_dwordx4 %s, v6, s[36:39], 0 offen offset:%d" % (vr(S + 4 * ds), 64 * ds), ("s", ds))
    A("s_lshl_b32 s26, s23, 21")
    A("s_lshr_b32 s27, s24, 1")
    A("s_lshl_b32 s27, s27, 15")
    A("s_add_u32 s26, s26, s27")
    A("s_and_b32 s27, s24, 1")
    A("s_lshl_b32 s27, s27, 13")
    A("s_add_u32 s26, s26, s27")
    A("v_lshlrev_b32 v12, 8, v2")
    A("v_lshl_add_u32 v12, v1, 4, v12")
    A("v_add_u32 v12, s26, v12")
    A("v_add_u32 v13, 0x1000, v12")
    A("s_mov_b32 s26, 0x%x" % f2u(SCALE))
    A("s_mov_b32 s27, 0xffff0000")
    A.wait_vm("zr")
    SC, NZ = 144, 148
    for G in range(4):
        src = 8 + G // 2
        zs = 10 + G // 2
        if G % 2 == 0:
            A("v_lshlrev_b32 v%d, 16, v%d" % (SC + G, src))
            A("v_lshlrev_b32 v%d, 16, v%d" % (NZ + G, zs))
        else:
            A("v_and_b32 v%d, s27, v%d" % (SC + G, src))
            A("v_and_b32 v%d, s27, v%d" % (NZ + G, zs))
        A("v_mul_f32 v%d, s26, v%d" % (SC + G, SC + G))
        A("v_mul_f32 v%d, -v%d, v%d" % (NZ + G, NZ + G, SC + G))
    T = 152
    for ds in range(4):
        d2 = ds + 4
        A.wait_vm(("s", d2))
        g1, g2 = ds // 2, ds // 2 + 2
        for e in range(8):
            x1, x2 = X + 8 * ds + e, X + 8 * d2 + e
            A("v_cvt_f32_i32 v%d, v%d" % (x1, x1))
            A("v_cvt_f32_i32 v%d, v%d" % (x2, x2))
            srcs = [C + 4 * ds + e // 2, S + 4 * ds + e // 2, C + 4 * d2 + e // 2, S + 4 * d2 + e // 2]
            for k, sr in enumerate(srcs):
                if e % 2 == 0:
                    A("v_lshlrev_b32 v%d, 16, v%d" % (T + k, sr))
                else:
                    A("v_and_b32 v%d, s27, v%d" % (T + k, sr))
            A("v_fma_f32 v%d, v%d, v%d, v%d" % (x1, x1, SC + g1, NZ + g1))
            A("v_fma_f32 v%d, v%d, v%d, v%d" % (x2, x2, SC + g2, NZ + g2))
            A("v_mul_f32 v%d, v%d, v%d" % (T, T, x1))
            A("v_mul_f32 v%d, v%d, v%d" % (T + 2, T + 2, x2))
            A("v_fma_f32 v%d, -v%d, v%d, v%d" % (T, x2, T + 1, T))
            A("v_fma_f32 v%d, v%d, v%d, v%d" % (x2, x1, T + 3, T + 2))
            A("v_mov_b32 v%d, v%d" % (x1, T))
        for (dd) in (ds, d2):
            b = X + 8 * dd
            for k in range(4):
                A("v_cvt_pk_bf16_f32 v%d, v%d, v%d" % (b + k, b + 2 * k, b + 2 * k + 1))
            A.vm("buffer_store_dwordx4 %s, v%d, s[44:47], 0 offen offset:%d" % (vr(b), 12 + dd // 4, (dd % 4) * 1024), ("st", dd))
    A("s_endpgm")
    A.vq = []

    A.label("L_pre_v")
    srd(A, 28, 10, 11, 16 << 20)
    srd(A, 40, 12, 13, 128 << 10)
    srd(A, 48, 14, 15, 128 << 10)
    A("v_lshrrev_b32 v1, 4, v0")
    A("v_and_b32 v2, 15, v0")
    A("s_lshr_b32 s25, s24, 1")
    A("s_and_b32 s24, s24, 1")
    A("s_lshl_b32 s26, s25, 5")
    A("s_lshl_b32 s27, s23, 11")
    A("s_add_u32 s26, s26, s27")
    A("v_lshl_add_u32 v3, v1, 2, s26")
    A("s_lshl_b32 s26, s24, 9")
    A("v_lshlrev_b32 v5, 10, v3")
    A("v_lshl_add_u32 v5, v2, 4, v5")
    A("v_add_u32 v5, s26, v5")
    A("v_add_u32 v6, 0x4000, v5")
    A("s_lshl_b32 s26, s24, 2")
    A("v_lshl_add_u32 v7, v3, 3, s26")
    X, SCR, ZR = 16, 80, 88
    for j in range(8):
        off = (j & 3) * 8 + (j >> 2) * 128
        A.vm("buffer_load_dword v%d, v7, s[40:43], 0 offen offset:%d" % (SCR + j, off), ("sc", j))
        A.vm("buffer_load_dword v%d, v7, s[48:51], 0 offen offset:%d" % (ZR + j, off), ("zr", j))
    for gg in range(2):
        for j in range(8):
            A.vm("buffer_load_dwordx4 %s, v%d, s[28:31], 0 offen offset:%d" % (vr(X + 32 * gg + 4 * j), 5 + (j >> 2), (j & 3) * 1024 + gg * 256), ("x", gg, j))
    A("s_lshl_b32 s26, s23, 21")
    A("s_lshr_b32 s27, s25, 2")
    A("s_lshl_b32 s27, s27, 17")
    A("s_add_u32 s26, s26, s27")
    A("s_and_b32 s27, s25, 3")
    A("s_lshl_b32 s27, s27, 12")
    A("s_add_u32 s26, s26, s27")
    A("s_lshl_b32 s27, s24, 16")
    A("s_add_u32 s26, s26, s27")
    A("s_add_u32 s26, s26, 0x4000")
    A("v_lshl_add_u32 v12, v0, 4, s26")
    A("v_add_u32 v13, 0x8000, v12")
    A("s_mov_b32 s27, 0xffff0000")
    A.wait_vm(("zr", 7))
    SC, NZ, O = 96, 112, 128
    for j in range(8):
        A("v_lshlrev_b32 v%d, 16, v%d" % (SC + j, SCR + j))
        A("v_and_b32 v%d, s27, v%d" % (SC + 8 + j, SCR + j))
        A("v_lshlrev_b32 v%d, 16, v%d" % (NZ + j, ZR + j))
        A("v_and_b32 v%d, s27, v%d" % (NZ + 8 + j, ZR + j))
        A("v_mul_f32 v%d, -v%d, v%d" % (NZ + j, NZ + j, SC + j))
        A("v_mul_f32 v%d, -v%d, v%d" % (NZ + 8 + j, NZ + 8 + j, SC + 8 + j))
    for gg in range(2):
        for j in range(8):
            if j % 2 == 0:
                A.wait_vm(("x", gg, j + 1))
            for f in range(4):
                x = X + 32 * gg + 4 * j + f
                A("v_cvt_f32_i32 v%d, v%d" % (x, x))
            for f in range(4):
                x = X + 32 * gg + 4 * j + f
                A("v_fma_f32 v%d, v%d, v%d, v%d" % (x, x, SC + 8 * gg + j, NZ + 8 * gg + j))
            if j % 2 == 1:
                for f in range(4):
                    x = X + 32 * gg + 4 * j + f
                    A("v_cvt_pk_bf16_f32 v%d, v%d, v%d" % (O + 16 * gg + 4 * f + j // 2, x - 4, x))
        for f in range(4):
            A.vm("buffer_store_dwordx4 %s, v%d, s[44:47], 0 offen offset:%d" % (vr(O + 16 * gg + 4 * f), 12 + gg, f * 1024), ("st", gg, f))
    A.label("L_pre_done")
    A("s_endpgm")
    A.vq = []


ONES, NEGM, LACC, S0, S1, PIN, OACC, TMP = 8, 12, 28, 44, 60, 76, 140, 204
AQ, AK, AV = 0, 128, 192
LDS_P, LDS_Q, LDS_L, LDS_M = 0, 32768, 32768, 36864
LDS_TOTAL = 65536
MF = "v_mfma_f32_16x16x32_bf16"


def k_load(A, idx, step):
    A.vm("buffer_load_dwordx4 %s, v%d, s[4:7], s28 offen offset:%d" % (ar(AK + 4 * idx), 4 + idx // 4, (idx % 4) * 1024), ("K", step, idx))


def v_load(A, idx, step):
    A.vm("buffer_load_dwordx4 %s, v%d, s[4:7], s29 offen offset:%d" % (ar(AV + 4 * idx), 4 + idx // 4, (idx % 4) * 1024), ("V", step, idx))


def adv(A, s, base):
    return ["s_add_u32 s%d, s%d, 0x20000" % (s, s), "s_and_b32 s%d, s%d, 0x1fffff" % (s, s)]


def e_ops(a):
    S = S0 if a == 0 else S1
    ops = []
    for qb in range(4):
        b = S + 4 * qb
        ops.append(("e", "v_exp_f32 v%d, v%d" % (b, b)))
        ops.append(("e", "v_exp_f32 v%d, v%d" % (b + 1, b + 1)))
        if qb > 0:
            pb = S + 4 * (qb - 1)
            ops.append(("c", "v_cvt_pk_bf16_f32 v%d, v%d, v%d" % (S0 + 4 * (qb - 1) + 2 * a + 1, pb + 2, pb + 3)))
        ops.append(("e", "v_exp_f32 v%d, v%d" % (b + 2, b + 2)))
        ops.append(("c", "v_cvt_pk_bf16_f32 v%d, v%d, v%d" % (S0 + 4 * qb + 2 * a, b, b + 1)))
        ops.append(("e", "v_exp_f32 v%d, v%d" % (b + 3, b + 3)))
    ops.append(("n", "s_nop 0"))
    ops.append(("c", "v_cvt_pk_bf16_f32 v%d, v%d, v%d" % (S0 + 12 + 2 * a + 1, S + 14, S + 15)))
    return ops


def phase_A(A, P, step, reload, pbuf_read, fill):
    WB = P.get("wb", 2)
    reads = [(ks, qb) for ks in range(4) for qb in range(4)] if pbuf_read is not None else []
    for g in range(16):
        a, ds = g // 8, g % 8
        if g % WB == 0:
            A.wait_vm(("K", step, g + WB - 1))
        for qb in range(4):
            S = (S0 if a == 0 else S1) + 4 * qb
            c = vr(NEGM + 4 * qb) if ds == 0 else vr(S)
            A("%s %s, %s, %s, %s" % (MF, vr(S), ar(AK + 4 * g), ar(AQ + 32 * qb + 4 * ds), c))
            m = 4 * g + qb
            if qb == 3 and reload:
                k_load(A, g, step + 1)
            if reads and g < 8 and qb in (0, 2):
                ks, q2 = reads.pop(0)
                A("ds_read_b128 %s, v1 offset:%d" % (vr(PIN + 16 * ks + 4 * q2), LDS_P + pbuf_read * 16384 + ks * 4096 + q2 * 1024))
            for s in fill.get(m, []):
                A(s)
    assert not reads


def phase_B(A, P, step, reload, fill):
    WB = P.get("wb", 2)
    for g in range(16):
        ks, db = g // 4, g % 4
        if g % WB == 0:
            A.wait_vm(("V", step, g + WB - 1), "lgkmcnt(0)" if g == 0 else "")
        for qb in range(4):
            O = OACC + 16 * db + 4 * qb
            A("%s %s, %s, %s, %s" % (MF, vr(O), ar(AV + 4 * g), vr(PIN + 16 * ks + 4 * qb), vr(O)))
            m = 4 * g + qb
            if qb == 3 and reload:
                v_load(A, g, step + 1)
            for s in fill.get(m, []):
                A(s)


def spread(ops, slots):
    fill = {}
    assert len(ops) <= len(slots), (len(ops), len(slots))
    for o, s in zip(ops, slots):
        fill.setdefault(s, []).append(o)
    return fill


def pwrite_ops(pbuf):
    ops = []
    for qb in range(4):
        ops.append("ds_write_b128 v2, %s offset:%d" % (vr(S0 + 4 * qb), LDS_P + pbuf * 16384 + qb * 1024))
        ops.append("%s %s, %s, %s, %s" % (MF, vr(LACC + 4 * qb), vr(ONES), vr(S0 + 4 * qb), vr(LACC + 4 * qb)))
    return ops


def body(A, P, t, reloadK, reloadV=True):
    e0 = [s for k, s in e_ops(0) if k != "n"]
    e1 = [s for k, s in e_ops(1) if k != "n"]
    slotsA = [m for m in range(36, 64) if m % 4 != 3]
    nA = P.get("nA", 18)
    slotsA = slotsA[:nA]
    fillA = spread(e0[:nA], slotsA)
    if reloadK:
        fillA.setdefault(62, []).extend([])
    phase_A(A, P, t + 1, reloadK, t & 1, fillA)
    if reloadK:
        for s in adv(A, 28, 0):
            A(s)
    rest = e0[nA:] + e1
    slotsB = [m for m in range(0, 64) if m % 4 != 3]
    n0 = len(e0) - nA
    assert n0 >= 6 or True
    slots = slotsB[:len(rest)]
    if n0 < 6:
        slots = slotsB[:n0] + [m for m in slotsB if m >= 6][:len(e1)]
    fillB = spread(rest, slots)
    last = slots[-1]
    w = pwrite_ops((t + 1) & 1)
    ws = [m for m in range(last + 2, 64)]
    assert len(ws) >= len(w), (last, len(ws))
    for o, s in zip(w, ws):
        fillB.setdefault(s, []).append(o)
    phase_B(A, P, t, reloadV, fillB)
    if reloadV:
        for s in adv(A, 29, 0):
            A(s)
    A("s_waitcnt lgkmcnt(0)")
    A("s_barrier")


def gen_attn(A, name, P):
    A.raw(".globl %s" % name)
    A.raw(".p2align 8")
    A.raw(".type %s,@function" % name)
    A.label(name)
    A("s_cmp_ge_u32 s2, 256")
    A("s_cbranch_scc1 L_at_done")
    A("s_load_dwordx2 s[36:37], s[0:1], 0")
    A("s_load_dwordx4 s[40:43], s[0:1], 56")
    A("s_load_dwordx2 s[44:45], s[0:1], 88")
    A("s_load_dwordx2 s[46:47], s[0:1], 104")
    A("v_lshrrev_b32 v1, 6, v0")
    A("v_and_b32 v0, 63, v0")
    A("v_readfirstlane_b32 s24, v1")
    A("s_and_b32 s25, s2, 7")
    A("s_lshr_b32 s26, s2, 3")
    A("s_mov_b32 s34, 0")
    A("v_lshrrev_b32 v3, 2, v0")
    A("v_and_b32 v8, 3, v0")
    A("s_lshl_b32 s30, s26, 6")
    A("s_lshl_b32 s31, s24, 4")
    A("s_add_u32 s30, s30, s31")
    A("v_add_u32 v9, s30, v3")
    A("v_lshlrev_b32 v9, 9, v9")
    A("v_lshl_add_u32 v9, v8, 4, v9")
    A("s_lshl_b32 s31, s25, 20")
    A("s_waitcnt lgkmcnt(0)")
    srd(A, 8, 36, 37, 8 << 20)
    srd(A, 12, 40, 41, 1 << 20)
    srd(A, 16, 42, 43, 1 << 20)
    QX, QC, QS = 76, 108, 140
    order = [0, 4, 1, 5, 2, 6, 3, 7]
    for ds in order:
        A.vm("buffer_load_dwordx4 %s, v9, s[8:11], s31 offen offset:%d" % (vr(QX + 4 * ds), 64 * ds), ("q", ds))
        A.vm("buffer_load_dwordx4 %s, v9, s[12:15], 0 offen offset:%d" % (vr(QC + 4 * ds), 64 * ds), ("c", ds))
        A.vm("buffer_load_dwordx4 %s, v9, s[16:19], 0 offen offset:%d" % (vr(QS + 4 * ds), 64 * ds), ("s", ds))
    A("s_lshl_b32 s31, s25, 21")
    A("s_add_u32 s46, s46, s31")
    A("s_addc_u32 s47, s47, 0")
    srd(A, 4, 46, 47, 2 << 20)
    srd(A, 20, 44, 45, 8 << 20)
    A("s_lshl_b32 s31, s24, 15")
    A("v_lshl_add_u32 v4, v0, 4, s31")
    A("v_add_u32 v5, 0x1000, v4")
    A("v_add_u32 v6, 0x2000, v4")
    A("v_add_u32 v7, 0x3000, v4")
    if P.get("rot", 1):
        A("s_lshr_b32 s33, s26, 1")
        A("s_lshl_b32 s33, s33, 17")
    else:
        A("s_mov_b32 s33, 0")
    A("s_mov_b32 s28, s33")
    A("s_add_u32 s29, s33, 0x4000")
    for i in range(16):
        k_load(A, i, 0)
    for s in adv(A, 28, 0):
        A(s)
    A("v_lshlrev_b32 v1, 4, v0")
    A("s_lshl_b32 s31, s24, 12")
    A("v_add_u32 v2, s31, v1")
    A("v_lshlrev_b32 v10, 8, v8")
    A("v_lshl_add_u32 v10, v3, 4, v10")
    A("s_lshl_b32 s31, s24, 13")
    A("v_add_u32 v10, s31, v10")
    A("s_mov_b32 s35, 0xffff0000")
    T = TMP
    for ds in range(4):
        d2 = ds + 4
        A.wait_vm(("s", d2))
        for e in range(8):
            srcs = [QX + 4 * ds + e // 2, QX + 4 * d2 + e // 2, QC + 4 * ds + e // 2, QS + 4 * ds + e // 2,
                    QC + 4 * d2 + e // 2, QS + 4 * d2 + e // 2]
            for k, sr in enumerate(srcs):
                if e % 2 == 0:
                    A("v_lshlrev_b32 v%d, 16, v%d" % (T + k, sr))
                else:
                    A("v_and_b32 v%d, s35, v%d" % (T + k, sr))
            A("v_mul_f32 v%d, v%d, v%d" % (T + 2, T + 2, T))
            A("v_mul_f32 v%d, v%d, v%d" % (T + 4, T + 4, T + 1))
            A("v_fma_f32 v%d, -v%d, v%d, v%d" % (T + 8 + e, T + 1, T + 3, T + 2))
            A("v_fma_f32 v%d, v%d, v%d, v%d" % (T + 16 + e, T, T + 5, T + 4))
        for k in range(4):
            A("v_cvt_pk_bf16_f32 v%d, v%d, v%d" % (T + 24 + k, T + 8 + 2 * k, T + 9 + 2 * k))
            A("v_cvt_pk_bf16_f32 v%d, v%d, v%d" % (T + 28 + k, T + 16 + 2 * k, T + 17 + 2 * k))
        A("ds_write_b128 v10, %s offset:%d" % (vr(T + 24), LDS_Q + ds * 1024))
        A("ds_write_b128 v10, %s offset:%d" % (vr(T + 28), LDS_Q + d2 * 1024))
        A("s_nop 1")
    for r in range(4):
        A("v_mov_b32 v%d, 0x3f803f80" % (ONES + r))
    for r in range(16):
        A("v_mov_b32 v%d, 0" % (NEGM + r))
    A("s_waitcnt lgkmcnt(0)")
    A("s_barrier")
    for ds in range(8):
        for qb in range(4):
            A("ds_read_b128 %s, v1 offset:%d" % (ar(AQ + 32 * qb + 4 * ds), LDS_Q + qb * 8192 + ds * 1024))
        if ds % 2 == 1:
            A("s_waitcnt lgkmcnt(4)")
    A.label("L_main")
    vq_main = list(A.vq)
    assert vq_main == [("K", 0, i) for i in range(16)]
    for r in range(16):
        A("v_mov_b32 v%d, 0" % (LACC + r))
    for r in range(64):
        A("v_mov_b32 v%d, 0" % (OACC + r))
    A("s_waitcnt lgkmcnt(0)")
    e0 = [s for _, s in e_ops(0)]
    e1 = [s for _, s in e_ops(1)]
    slotsA = [m for m in range(36, 64)]
    phase_A(A, P, 0, True, None, spread(e0, slotsA))
    for s in adv(A, 28, 0):
        A(s)
    for i in range(16):
        v_load(A, i, 0)
    for s in adv(A, 29, 0):
        A(s)
    for s in e1:
        A(s)
    A("s_nop 1")
    for s in pwrite_ops(0):
        A(s)
    A("s_waitcnt lgkmcnt(0)")
    A("s_barrier")
    A("s_mov_b32 s27, 7")
    A.raw(".p2align 6")
    A.label("L_loop")
    q0 = [(k, s, i) for (k, s, i) in A.vq]
    body(A, P, 0, True)
    body(A, P, 1, True)
    assert [(k, s - 2, i) for (k, s, i) in A.vq] == q0, (A.vq, q0)
    A("s_sub_u32 s27, s27, 1")
    A("s_cmp_lg_u32 s27, 0")
    A("s_cbranch_scc1 L_loop")
    A.vq = [(k, s + 12, i) for (k, s, i) in A.vq]
    body(A, P, 14, False)
    for ks in range(4):
        for qb in range(4):
            A("ds_read_b128 %s, v1 offset:%d" % (vr(PIN + 16 * ks + 4 * qb), LDS_P + 16384 + ks * 4096 + qb * 1024))
        if ks == 2:
            A("s_waitcnt lgkmcnt(4)")
    A("v_and_b32 v3, 15, v0")
    A("v_lshlrev_b32 v8, 4, v3")
    A("s_lshl_b32 s31, s24, 2")
    A("v_add_u32 v9, s31, v8")
    for qb in range(4):
        A("ds_write_b32 v9, v%d offset:%d" % (LACC + 4 * qb, LDS_L + qb * 256))
    phase_B(A, P, 15, False, {})
    assert not A.vq
    A("s_barrier")
    for qb in range(4):
        A("ds_read_b128 %s, v8 offset:%d" % (vr(T + 4 * qb), LDS_L + qb * 256))
    A("v_lshrrev_b32 v9, 4, v0")
    A("s_lshl_b32 s30, s26, 6")
    A("s_lshl_b32 s31, s25, 11")
    A("s_add_u32 s30, s30, s31")
    A("v_add_u32 v10, s30, v3")
    A("v_lshlrev_b32 v10, 9, v10")
    A("v_lshl_add_u32 v10, v9, 5, v10")
    A("s_lshl_b32 s31, s24, 7")
    A("v_add_u32 v10, s31, v10")
    A("s_waitcnt lgkmcnt(0)")
    for qb in range(4):
        A("v_add_f32 v%d, v%d, v%d" % (T + 4 * qb, T + 4 * qb, T + 4 * qb + 1))
        A("v_add_f32 v%d, v%d, v%d" % (T + 4 * qb + 2, T + 4 * qb + 2, T + 4 * qb + 3))
    for qb in range(4):
        A("v_add_f32 v%d, v%d, v%d" % (T + 4 * qb, T + 4 * qb, T + 4 * qb + 2))
    A("v_min3_f32 v%d, v%d, v%d, v%d" % (T + 1, T, T + 4, T + 8))
    A("v_max3_f32 v%d, v%d, v%d, v%d" % (T + 2, T, T + 4, T + 8))
    A("v_min_f32 v%d, v%d, v%d" % (T + 1, T + 1, T + 12))
    A("v_max_f32 v%d, v%d, v%d" % (T + 2, T + 2, T + 12))
    A("v_cmp_gt_f32 vcc, 0x%x, v%d" % (f2u(2.0 ** -40), T + 1))
    A("s_nop 3")
    A("s_mov_b64 s[38:39], vcc")
    A("v_cmp_lt_f32 vcc, 0x%x, v%d" % (f2u(2.0 ** 40), T + 2))
    A("s_nop 3")
    A("s_or_b64 s[38:39], vcc, s[38:39]")
    A("s_cselect_b32 s30, 1, 0")
    A("s_cmp_lt_u32 s34, s30")
    A("s_cbranch_scc1 L_fallback")
    for qb in range(4):
        A("v_rcp_f32 v%d, v%d" % (T + 4 * qb, T + 4 * qb))
    A("s_nop 0")
    for qb in range(4):
        R = T + 16 + 8 * (qb % 2)
        for f in range(4):
            for r in range(4):
                x = OACC + 16 * f + 4 * qb + r
                A("v_mul_f32 v%d, v%d, v%d" % (x, x, T + 4 * qb))
        for r in range(4):
            for h in range(2):
                A("v_cvt_pk_bf16_f32 v%d, v%d, v%d" % (R + 2 * r + h, OACC + 16 * (2 * h) + 4 * qb + r, OACC + 16 * (2 * h + 1) + 4 * qb + r))
        A("s_mov_b32 s31, %d" % (qb * 8192))
        A.vm("buffer_store_dwordx4 %s, v10, s[20:23], s31 offen" % vr(R), ("o", qb, 0))
        A.vm("buffer_store_dwordx4 %s, v10, s[20:23], s31 offen offset:16" % vr(R + 4), ("o", qb, 1))
    A.label("L_at_done")
    A("s_endpgm")
    A.vq = []

    A.label("L_fallback")
    A("s_mov_b32 s34, 1")
    MX = T
    for qb in range(4):
        A("v_mov_b32 v%d, 0xff800000" % (MX + qb))
    A("s_mov_b32 s28, 0")
    A("s_mov_b32 s27, 16")
    A.label("L_fb_loop")
    for i in range(16):
        k_load(A, i, 0)
    A.wait_vm_all()
    for g in range(16):
        a, ds = g // 8, g % 8
        for qb in range(4):
            S = (S0 if a == 0 else S1) + 4 * qb
            A("%s %s, %s, %s, %s" % (MF, vr(S), ar(AK + 4 * g), ar(AQ + 32 * qb + 4 * ds), "0" if ds == 0 else vr(S)))
    A("s_nop 15")
    for qb in range(4):
        for S in (S0, S1):
            b = S + 4 * qb
            A("v_max3_f32 v%d, v%d, v%d, v%d" % (MX + qb, MX + qb, b, b + 1))
            A("v_max3_f32 v%d, v%d, v%d, v%d" % (MX + qb, MX + qb, b + 2, b + 3))
    A("s_add_u32 s28, s28, 0x20000")
    A("s_sub_u32 s27, s27, 1")
    A("s_cmp_lg_u32 s27, 0")
    A("s_cbranch_scc1 L_fb_loop")
    A("v_and_b32 v3, 15, v0")
    A("v_lshrrev_b32 v9, 4, v0")
    A("v_lshlrev_b32 v8, 6, v3")
    A("s_lshl_b32 s31, s24, 4")
    A("v_lshl_add_u32 v9, v9, 2, s31")
    A("v_add_u32 v9, v9, v8")
    for qb in range(4):
        A("ds_write_b32 v9, v%d offset:%d" % (MX + qb, LDS_M + qb * 1024))
    A("s_waitcnt lgkmcnt(0)")
    A("s_barrier")
    for qb in range(4):
        for k in range(4):
            A("ds_read_b128 %s, v8 offset:%d" % (vr(PIN + 4 * k), LDS_M + qb * 1024 + 16 * k))
        A("s_waitcnt lgkmcnt(0)")
        A("v_max3_f32 v%d, v%d, v%d, v%d" % (MX, PIN, PIN + 1, PIN + 2))
        for k in range(3, 15, 2):
            A("v_max3_f32 v%d, v%d, v%d, v%d" % (MX, MX, PIN + k, PIN + k + 1))
        A("v_max_f32 v%d, v%d, v%d" % (MX, MX, PIN + 15))
        for r in range(4):
            A("v_sub_f32 v%d, 0, v%d" % (NEGM + 4 * qb + r, MX))
    for r in range(4):
        A("v_mov_b32 v%d, 0x3f803f80" % (ONES + r))
    A("s_mov_b32 s28, s33")
    A("s_add_u32 s29, s33, 0x4000")
    for i in range(16):
        k_load(A, i, 0)
    for s in adv(A, 28, 0):
        A(s)
    assert A.vq == vq_main
    A("s_branch L_main")
    A.vq = []


def gen(P):
    A = Asm()
    pre, att = "kvq_pre_kernel", NAME + "_kernel"
    A.raw(HEADER.rstrip("\n"))
    A.raw("; @launch kernel=%s grid=(512,1,1) block=(256,1,1) lds=0" % pre)
    A.raw("; @launch kernel=%s grid=(256,1,1) block=(256,1,1) lds=%d" % (att, LDS_TOTAL))
    A.raw('.amdgcn_target "amdgcn-amd-amdhsa--gfx950"')
    A.raw(".text")
    gen_pre(A, pre, P)
    gen_attn(A, att, P)
    A.raw('.section .rodata,"a"')
    A.raw(".p2align 6")
    kdesc(A, pre, 160, 160)
    A.raw(".p2align 6")
    kdesc(A, att, 512, 256)
    return A.text()


if __name__ == "__main__":
    P = eval(sys.argv[2]) if len(sys.argv) > 2 else {}
    out = sys.argv[1] if len(sys.argv) > 1 else "cdna_kernels/%s.s" % NAME
    open(out, "w").write(gen(P))
```

```python
import struct, sys, math

NAME = "standalone__kv_cache_quant_pre_rope_vs_post_rope__prompt"
HEADER = open("cdna_kernels/%s.s.ref" % NAME).read().split("; Override launch")[0]


def f2u(x):
    return struct.unpack("<I", struct.pack("<f", x))[0]


class Asm:
    def __init__(self):
        self.L = []
        self.vq = []

    def __call__(self, s):
        self.L.append("    " + s)

    def label(self, s):
        self.L.append(s + ":")

    def raw(self, s):
        self.L.append(s)

    def vm(self, s, tag):
        self(s)
        self.vq.append(tag)
        assert len(self.vq) <= 63, "vmcnt overflow"

    def wait_vm(self, tag, extra=""):
        if tag not in self.vq:
            if extra:
                self("s_waitcnt " + extra)
            return
        i = len(self.vq) - 1 - self.vq[::-1].index(tag)
        n = len(self.vq) - 1 - i
        self("s_waitcnt vmcnt(%d)%s" % (n, (" " + extra) if extra else ""))
        self.vq = self.vq[i + 1:]

    def wait_vm_all(self):
        self("s_waitcnt vmcnt(0)")
        self.vq = []

    def text(self):
        return "\n".join(self.L) + "\n"


def vr(b, n=4):
    return "v[%d:%d]" % (b, b + n - 1) if n > 1 else "v%d" % b


def ar(b, n=4):
    return "a[%d:%d]" % (b, b + n - 1) if n > 1 else "a%d" % b


def srd(A, d, lo, hi, nbytes):
    A("s_mov_b32 s%d, s%d" % (d, lo))
    A("s_and_b32 s%d, s%d, 0xffff" % (d + 1, hi))
    A("s_mov_b32 s%d, 0x%x" % (d + 2, nbytes))
    A("s_mov_b32 s%d, 0x20000" % (d + 3))


def kdesc(A, name, nvgpr, accum, nsgpr=96):
    A.raw(".amdhsa_kernel %s" % name)
    A.raw("  .amdhsa_next_free_vgpr %d" % nvgpr)
    A.raw("  .amdhsa_next_free_sgpr %d" % nsgpr)
    A.raw("  .amdhsa_accum_offset %d" % accum)
    A.raw("  .amdhsa_group_segment_fixed_size 0")
    A.raw("  .amdhsa_kernarg_size 112")
    A.raw("  .amdhsa_user_sgpr_count 2")
    A.raw("  .amdhsa_user_sgpr_kernarg_segment_ptr 1")
    A.raw("  .amdhsa_system_sgpr_workgroup_id_x 1")
    A.raw("  .amdhsa_float_denorm_mode_32 3")
    A.raw(".end_amdhsa_kernel")


SCALE = math.log2(math.e) / 16.0


def stamp(A, P, i):
    if not P.get("stamps"):
        return
    A("s_memtime s[60:61]")
    A("s_memrealtime s[62:63]")
    A("s_waitcnt lgkmcnt(0)")
    A("s_mov_b32 s%d, s60" % (64 + 2 * i))
    A("s_mov_b32 s%d, s62" % (65 + 2 * i))


def stamp_flush(A, P, n, base, swave):
    if not P.get("stamps"):
        return
    A("s_waitcnt vmcnt(0)")
    stamp(A, P, n - 1)
    A("s_load_dwordx2 s[60:61], s[0:1], 104")
    A("s_waitcnt lgkmcnt(0)")
    A("s_add_u32 s60, s60, 0x%x" % ((64 << 20) + base))
    A("s_addc_u32 s61, s61, 0")
    A("s_and_b32 s61, s61, 0xffff")
    A("s_mov_b32 s62, 0x100000")
    A("s_mov_b32 s63, 0x20000")
    for k in range(2 * n):
        A("v_writelane_b32 v1, s%d, %d" % (64 + k, k))
    A("s_lshl_b32 s59, s2, 2")
    A("s_add_u32 s59, s59, s%d" % swave)
    A("s_lshl_b32 s59, s59, 6" if n <= 8 else "s_lshl_b32 s59, s59, 7")
    A("v_lshl_add_u32 v2, v0, 2, s59")
    A("s_mov_b64 exec, 0x%x" % ((1 << (2 * n)) - 1))
    A("buffer_store_dword v1, v2, s[60:63], 0 offen")


def gen_pre(A, name, P):
    A.raw(".globl %s" % name)
    A.raw(".p2align 8")
    A.raw(".type %s,@function" % name)
    A.label(name)
    A("s_cmp_ge_u32 s2, 512")
    A("s_cbranch_scc1 L_pre_done")
    A("s_load_dwordx4 s[4:7], s[0:1], 8")
    A("s_load_dwordx4 s[8:11], s[0:1], 24")
    A("s_load_dwordx4 s[12:15], s[0:1], 40")
    A("s_load_dwordx4 s[16:19], s[0:1], 72")
    A("s_load_dwordx2 s[20:21], s[0:1], 104")
    stamp(A, P, 0)
    A("v_lshrrev_b32 v1, 6, v0")
    A("v_and_b32 v0, 63, v0")
    A("v_readfirstlane_b32 s22, v1")
    if P.get("pre_map", 0) == 0:
        A("s_and_b32 s23, s2, 7")
        A("s_lshr_b32 s24, s2, 3")
    else:
        A("s_lshr_b32 s23, s2, 6")
        A("s_and_b32 s24, s2, 63")
    A("s_lshl_b32 s24, s24, 1")
    A("s_lshr_b32 s25, s22, 1")
    A("s_add_u32 s24, s24, s25")
    A("s_waitcnt lgkmcnt(0)")
    srd(A, 44, 20, 21, 16 << 20)
    A("s_bitcmp1_b32 s22, 0")
    A("s_cbranch_scc1 L_pre_v")

    srd(A, 28, 4, 5, 16 << 20)
    srd(A, 32, 16, 17, 1 << 20)
    srd(A, 36, 18, 19, 1 << 20)
    srd(A, 40, 6, 7, 128 << 10)
    srd(A, 48, 8, 9, 128 << 10)
    A("v_lshrrev_b32 v1, 2, v0")
    A("v_and_b32 v2, 3, v0")
    A("s_lshl_b32 s26, s24, 4")
    A("v_add_u32 v3, s26, v1")
    A("s_lshl_b32 s27, s23, 11")
    A("v_add_u32 v4, s27, v3")
    A("v_lshlrev_b32 v5, 10, v4")
    A("v_lshl_add_u32 v5, v2, 5, v5")
    A("v_lshlrev_b32 v6, 9, v3")
    A("v_lshl_add_u32 v6, v2, 4, v6")
    A("v_lshlrev_b32 v7, 3, v4")
    X, C, S = 16, 80, 112
    A.vm("buffer_load_dwordx2 v[8:9], v7, s[40:43], 0 offen", "sc")
    A.vm("buffer_load_dwordx2 v[10:11], v7, s[48:51], 0 offen", "zr")
    order = [0, 4, 1, 5, 2, 6, 3, 7]
    for ds in order:
        A.vm("buffer_load_dwordx4 %s, v5, s[28:31], 0 offen offset:%d%s" % (vr(X + 8 * ds), 128 * ds, P.get("ntk", "")), ("x", ds, 0))
        A.vm("buffer_load_dwordx4 %s, v5, s[28:31], 0 offen offset:%d%s" % (vr(X + 8 * ds + 4), 128 * ds + 16, P.get("ntk", "")), ("x", ds, 1))
        A.vm("buffer_load_dwordx4 %s, v6, s[32:35], 0 offen offset:%d" % (vr(C + 4 * ds), 64 * ds), ("c", ds))
        A.vm("buffer_load_dwordx4 %s, v6, s[36:39], 0 offen offset:%d" % (vr(S + 4 * ds), 64 * ds), ("s", ds))
    A("s_lshl_b32 s26, s23, 21")
    A("s_lshr_b32 s27, s24, 1")
    A("s_lshl_b32 s27, s27, 15")
    A("s_add_u32 s26, s26, s27")
    A("s_and_b32 s27, s24, 1")
    A("s_lshl_b32 s27, s27, 13")
    A("s_add_u32 s26, s26, s27")
    A("v_lshlrev_b32 v12, 8, v2")
    A("v_lshl_add_u32 v12, v1, 4, v12")
    A("v_add_u32 v12, s26, v12")
    A("v_add_u32 v13, 0x1000, v12")
    A("s_mov_b32 s26, 0x%x" % f2u(SCALE))
    A("s_mov_b32 s27, 0xffff0000")
    A.wait_vm("zr")
    stamp(A, P, 1)
    SC, NZ = 144, 148
    for G in range(4):
        src = 8 + G // 2
        zs = 10 + G // 2
        if G % 2 == 0:
            A("v_lshlrev_b32 v%d, 16, v%d" % (SC + G, src))
            A("v_lshlrev_b32 v%d, 16, v%d" % (NZ + G, zs))
        else:
            A("v_and_b32 v%d, s27, v%d" % (SC + G, src))
            A("v_and_b32 v%d, s27, v%d" % (NZ + G, zs))
        A("v_mul_f32 v%d, s26, v%d" % (SC + G, SC + G))
        A("v_mul_f32 v%d, -v%d, v%d" % (NZ + G, NZ + G, SC + G))
    T = 152
    for ds in range(4):
        d2 = ds + 4
        A.wait_vm(("s", d2))
        g1, g2 = ds // 2, ds // 2 + 2
        for e in range(8):
            x1, x2 = X + 8 * ds + e, X + 8 * d2 + e
            A("v_cvt_f32_i32 v%d, v%d" % (x1, x1))
            A("v_cvt_f32_i32 v%d, v%d" % (x2, x2))
            srcs = [C + 4 * ds + e // 2, S + 4 * ds + e // 2, C + 4 * d2 + e // 2, S + 4 * d2 + e // 2]
            for k, sr in enumerate(srcs):
                if e % 2 == 0:
                    A("v_lshlrev_b32 v%d, 16, v%d" % (T + k, sr))
                else:
                    A("v_and_b32 v%d, s27, v%d" % (T + k, sr))
            A("v_fma_f32 v%d, v%d, v%d, v%d" % (x1, x1, SC + g1, NZ + g1))
            A("v_fma_f32 v%d, v%d, v%d, v%d" % (x2, x2, SC + g2, NZ + g2))
            A("v_mul_f32 v%d, v%d, v%d" % (T, T, x1))
            A("v_mul_f32 v%d, v%d, v%d" % (T + 2, T + 2, x2))
            A("v_fma_f32 v%d, -v%d, v%d, v%d" % (T, x2, T + 1, T))
            A("v_fma_f32 v%d, v%d, v%d, v%d" % (x2, x1, T + 3, T + 2))
            A("v_mov_b32 v%d, v%d" % (x1, T))
        for (dd) in (ds, d2):
            b = X + 8 * dd
            for k in range(4):
                A("v_cvt_pk_bf16_f32 v%d, v%d, v%d" % (b + k, b + 2 * k, b + 2 * k + 1))
            A.vm("buffer_store_dwordx4 %s, v%d, s[44:47], 0 offen offset:%d%s" % (vr(b), 12 + dd // 4, (dd % 4) * 1024, P.get("sts", "")), ("st", dd))
    stamp(A, P, 2)
    stamp_flush(A, P, 4, 0x10000, 22)
    A("s_endpgm")
    A.vq = []

    A.label("L_pre_v")
    srd(A, 28, 10, 11, 16 << 20)
    srd(A, 40, 12, 13, 128 << 10)
    srd(A, 48, 14, 15, 128 << 10)
    A("v_lshrrev_b32 v1, 4, v0")
    A("v_and_b32 v2, 15, v0")
    A("s_lshr_b32 s25, s24, 1")
    A("s_and_b32 s24, s24, 1")
    A("s_lshl_b32 s26, s25, 5")
    A("s_lshl_b32 s27, s23, 11")
    A("s_add_u32 s26, s26, s27")
    A("v_lshl_add_u32 v3, v1, 2, s26")
    A("s_lshl_b32 s26, s24, 9")
    A("v_lshlrev_b32 v5, 10, v3")
    A("v_lshl_add_u32 v5, v2, 4, v5")
    A("v_add_u32 v5, s26, v5")
    A("v_add_u32 v6, 0x4000, v5")
    A("s_lshl_b32 s26, s24, 2")
    A("v_lshl_add_u32 v7, v3, 3, s26")
    X, SCR, ZR = 16, 80, 88
    for j in range(8):
        off = (j & 3) * 8 + (j >> 2) * 128
        A.vm("buffer_load_dword v%d, v7, s[40:43], 0 offen offset:%d" % (SCR + j, off), ("sc", j))
        A.vm("buffer_load_dword v%d, v7, s[48:51], 0 offen offset:%d" % (ZR + j, off), ("zr", j))
    for gg in range(2):
        for j in range(8):
            A.vm("buffer_load_dwordx4 %s, v%d, s[28:31], 0 offen offset:%d%s" % (vr(X + 32 * gg + 4 * j), 5 + (j >> 2), (j & 3) * 1024 + gg * 256, P.get("ntv", "")), ("x", gg, j))
    A("s_lshl_b32 s26, s23, 21")
    A("s_lshr_b32 s27, s25, 2")
    A("s_lshl_b32 s27, s27, 17")
    A("s_add_u32 s26, s26, s27")
    A("s_and_b32 s27, s25, 3")
    A("s_lshl_b32 s27, s27, 12")
    A("s_add_u32 s26, s26, s27")
    A("s_lshl_b32 s27, s24, 16")
    A("s_add_u32 s26, s26, s27")
    A("s_add_u32 s26, s26, 0x4000")
    A("v_lshl_add_u32 v12, v0, 4, s26")
    A("v_add_u32 v13, 0x8000, v12")
    A("s_mov_b32 s27, 0xffff0000")
    A.wait_vm(("zr", 7))
    stamp(A, P, 1)
    SC, NZ, O = 96, 112, 128
    for j in range(8):
        A("v_lshlrev_b32 v%d, 16, v%d" % (SC + j, SCR + j))
        A("v_and_b32 v%d, s27, v%d" % (SC + 8 + j, SCR + j))
        A("v_lshlrev_b32 v%d, 16, v%d" % (NZ + j, ZR + j))
        A("v_and_b32 v%d, s27, v%d" % (NZ + 8 + j, ZR + j))
        A("v_mul_f32 v%d, -v%d, v%d" % (NZ + j, NZ + j, SC + j))
        A("v_mul_f32 v%d, -v%d, v%d" % (NZ + 8 + j, NZ + 8 + j, SC + 8 + j))
    for gg in range(2):
        for j in range(8):
            if j % 2 == 0:
                A.wait_vm(("x", gg, j + 1))
            for f in range(4):
                x = X + 32 * gg + 4 * j + f
                A("v_cvt_f32_i32 v%d, v%d" % (x, x))
            for f in range(4):
                x = X + 32 * gg + 4 * j + f
                A("v_fma_f32 v%d, v%d, v%d, v%d" % (x, x, SC + 8 * gg + j, NZ + 8 * gg + j))
            if j % 2 == 1:
                for f in range(4):
                    x = X + 32 * gg + 4 * j + f
                    A("v_cvt_pk_bf16_f32 v%d, v%d, v%d" % (O + 16 * gg + 4 * f + j // 2, x - 4, x))
        for f in range(4):
            A.vm("buffer_store_dwordx4 %s, v%d, s[44:47], 0 offen offset:%d%s" % (vr(O + 16 * gg + 4 * f), 12 + gg, f * 1024, P.get("sts", "")), ("st", gg, f))
    stamp(A, P, 2)
    stamp_flush(A, P, 4, 0x10000, 22)
    A.label("L_pre_done")
    A("s_endpgm")
    A.vq = []


ONES, NEGM, LACC, S0, S1, PIN, OACC, TMP = 8, 12, 28, 44, 60, 76, 140, 204
AQ, AK, AV = 0, 128, 192
LDS_P, LDS_Q, LDS_L, LDS_M = 0, 32768, 32768, 36864
LDS_TOTAL = 65536
MF = "v_mfma_f32_16x16x32_bf16"


def k_load(A, idx, step):
    A.vm("buffer_load_dwordx4 %s, v%d, s[4:7], s28 offen offset:%d" % (ar(AK + 4 * idx), 4 + idx // 4, (idx % 4) * 1024), ("K", step, idx))


def v_load(A, idx, step):
    A.vm("buffer_load_dwordx4 %s, v%d, s[4:7], s29 offen offset:%d" % (ar(AV + 4 * idx), 4 + idx // 4, (idx % 4) * 1024), ("V", step, idx))


def adv(A, s, base):
    return ["s_add_u32 s%d, s%d, 0x20000" % (s, s), "s_and_b32 s%d, s%d, 0x1fffff" % (s, s)]


def e_ops(a):
    S = S0 if a == 0 else S1
    ops = []
    for qb in range(4):
        b = S + 4 * qb
        ops.append(("e", "v_exp_f32 v%d, v%d" % (b, b)))
        ops.append(("e", "v_exp_f32 v%d, v%d" % (b + 1, b + 1)))
        if qb > 0:
            pb = S + 4 * (qb - 1)
            ops.append(("c", "v_cvt_pk_bf16_f32 v%d, v%d, v%d" % (S0 + 4 * (qb - 1) + 2 * a + 1, pb + 2, pb + 3)))
        ops.append(("e", "v_exp_f32 v%d, v%d" % (b + 2, b + 2)))
        ops.append(("c", "v_cvt_pk_bf16_f32 v%d, v%d, v%d" % (S0 + 4 * qb + 2 * a, b, b + 1)))
        ops.append(("e", "v_exp_f32 v%d, v%d" % (b + 3, b + 3)))
    ops.append(("n", "s_nop 0"))
    ops.append(("c", "v_cvt_pk_bf16_f32 v%d, v%d, v%d" % (S0 + 12 + 2 * a + 1, S + 14, S + 15)))
    return ops


def phase_A(A, P, step, reload, pbuf_read, fill):
    WB = P.get("wb", 2)
    reads = [(ks, qb) for ks in range(4) for qb in range(4)] if pbuf_read is not None else []
    for g in range(16):
        a, ds = g // 8, g % 8
        if g % WB == 0:
            A.wait_vm(("K", step, g + WB - 1))
        for qb in range(4):
            S = (S0 if a == 0 else S1) + 4 * qb
            c = vr(NEGM + 4 * qb) if ds == 0 else vr(S)
            A("%s %s, %s, %s, %s" % (MF, vr(S), ar(AK + 4 * g), ar(AQ + 32 * qb + 4 * ds), c))
            m = 4 * g + qb
            if qb == 3 and reload:
                k_load(A, g, step + 1)
            if reads and g < 8 and qb in (0, 2):
                ks, q2 = reads.pop(0)
                A("ds_read_b128 %s, v1 offset:%d" % (vr(PIN + 16 * ks + 4 * q2), LDS_P + pbuf_read * 16384 + ks * 4096 + q2 * 1024))
            for s in fill.get(m, []):
                A(s)
    assert not reads


def phase_B(A, P, step, reload, fill):
    WB = P.get("wb", 2)
    for g in range(16):
        ks, db = g // 4, g % 4
        if g % WB == 0:
            A.wait_vm(("V", step, g + WB - 1), "lgkmcnt(0)" if g == 0 else "")
        for qb in range(4):
            O = OACC + 16 * db + 4 * qb
            A("%s %s, %s, %s, %s" % (MF, vr(O), ar(AV + 4 * g), vr(PIN + 16 * ks + 4 * qb), vr(O)))
            m = 4 * g + qb
            if qb == 3 and reload:
                v_load(A, g, step + 1)
            for s in fill.get(m, []):
                A(s)


def spread(ops, slots):
    fill = {}
    assert len(ops) <= len(slots), (len(ops), len(slots))
    for o, s in zip(ops, slots):
        fill.setdefault(s, []).append(o)
    return fill


def pwrite_ops(pbuf):
    ops = []
    for qb in range(4):
        ops.append("ds_write_b128 v2, %s offset:%d" % (vr(S0 + 4 * qb), LDS_P + pbuf * 16384 + qb * 1024))
        ops.append("%s %s, %s, %s, %s" % (MF, vr(LACC + 4 * qb), vr(ONES), vr(S0 + 4 * qb), vr(LACC + 4 * qb)))
    return ops


def body(A, P, t, reloadK, reloadV=True):
    e0 = [s for k, s in e_ops(0) if k != "n"]
    e1 = [s for k, s in e_ops(1) if k != "n"]
    slotsA = [m for m in range(36, 64) if m % 4 != 3]
    nA = P.get("nA", 18)
    slotsA = slotsA[:nA]
    fillA = spread(e0[:nA], slotsA)
    if reloadK:
        fillA.setdefault(62, []).extend([])
    phase_A(A, P, t + 1, reloadK, t & 1, fillA)
    if reloadK:
        for s in adv(A, 28, 0):
            A(s)
    rest = e0[nA:] + e1
    slotsB = [m for m in range(0, 64) if m % 4 != 3]
    n0 = len(e0) - nA
    assert n0 >= 6 or True
    slots = slotsB[:len(rest)]
    if n0 < 6:
        slots = slotsB[:n0] + [m for m in slotsB if m >= 6][:len(e1)]
    fillB = spread(rest, slots)
    last = slots[-1]
    w = pwrite_ops((t + 1) & 1)
    ws = [m for m in range(last + 2, 64)]
    assert len(ws) >= len(w), (last, len(ws))
    for o, s in zip(w, ws):
        fillB.setdefault(s, []).append(o)
    phase_B(A, P, t, reloadV, fillB)
    if reloadV:
        for s in adv(A, 29, 0):
            A(s)
    A("s_waitcnt lgkmcnt(0)")
    A("s_barrier")


def gen_attn(A, name, P):
    A.raw(".globl %s" % name)
    A.raw(".p2align 8")
    A.raw(".type %s,@function" % name)
    A.label(name)
    A("s_cmp_ge_u32 s2, 256")
    A("s_cbranch_scc1 L_at_done")
    A("s_load_dwordx2 s[36:37], s[0:1], 0")
    A("s_load_dwordx4 s[40:43], s[0:1], 56")
    A("s_load_dwordx2 s[44:45], s[0:1], 88")
    A("s_load_dwordx2 s[46:47], s[0:1], 104")
    stamp(A, P, 0)
    A("v_lshrrev_b32 v1, 6, v0")
    A("v_and_b32 v0, 63, v0")
    A("v_readfirstlane_b32 s24, v1")
    A("s_and_b32 s25, s2, 7")
    A("s_lshr_b32 s26, s2, 3")
    A("s_mov_b32 s34, 0")
    A("v_lshrrev_b32 v3, 2, v0")
    A("v_and_b32 v8, 3, v0")
    A("s_lshl_b32 s30, s26, 6")
    A("s_lshl_b32 s31, s24, 4")
    A("s_add_u32 s30, s30, s31")
    A("v_add_u32 v9, s30, v3")
    A("v_lshlrev_b32 v9, 9, v9")
    A("v_lshl_add_u32 v9, v8, 4, v9")
    A("s_lshl_b32 s31, s25, 20")
    A("s_waitcnt lgkmcnt(0)")
    srd(A, 8, 36, 37, 8 << 20)
    srd(A, 12, 40, 41, 1 << 20)
    srd(A, 16, 42, 43, 1 << 20)
    QX, QC, QS = 76, 108, 140
    order = [0, 4, 1, 5, 2, 6, 3, 7]
    for ds in order:
        A.vm("buffer_load_dwordx4 %s, v9, s[8:11], s31 offen offset:%d%s" % (vr(QX + 4 * ds), 64 * ds, P.get("ntq", "")), ("q", ds))
        A.vm("buffer_load_dwordx4 %s, v9, s[12:15], 0 offen offset:%d" % (vr(QC + 4 * ds), 64 * ds), ("c", ds))
        A.vm("buffer_load_dwordx4 %s, v9, s[16:19], 0 offen offset:%d" % (vr(QS + 4 * ds), 64 * ds), ("s", ds))
    A("s_lshl_b32 s31, s25, 21")
    A("s_add_u32 s46, s46, s31")
    A("s_addc_u32 s47, s47, 0")
    srd(A, 4, 46, 47, 2 << 20)
    srd(A, 20, 44, 45, 8 << 20)
    A("s_lshl_b32 s31, s24, 15")
    A("v_lshl_add_u32 v4, v0, 4, s31")
    A("v_add_u32 v5, 0x1000, v4")
    A("v_add_u32 v6, 0x2000, v4")
    A("v_add_u32 v7, 0x3000, v4")
    if P.get("rot", 1):
        A("s_lshr_b32 s33, s26, 1")
        A("s_lshl_b32 s33, s33, 17")
    else:
        A("s_mov_b32 s33, 0")
    A("s_mov_b32 s28, s33")
    A("s_add_u32 s29, s33, 0x4000")
    for i in range(16):
        k_load(A, i, 0)
    for s in adv(A, 28, 0):
        A(s)
    A("v_lshlrev_b32 v1, 4, v0")
    A("s_lshl_b32 s31, s24, 12")
    A("v_add_u32 v2, s31, v1")
    A("v_lshlrev_b32 v10, 8, v8")
    A("v_lshl_add_u32 v10, v3, 4, v10")
    A("s_lshl_b32 s31, s24, 13")
    A("v_add_u32 v10, s31, v10")
    A("s_mov_b32 s35, 0xffff0000")
    T = TMP
    for ds in range(4):
        d2 = ds + 4
        A.wait_vm(("s", d2))
        if ds == 0:
            stamp(A, P, 1)
        for e in range(8):
            srcs = [QX + 4 * ds + e // 2, QX + 4 * d2 + e // 2, QC + 4 * ds + e // 2, QS + 4 * ds + e // 2,
                    QC + 4 * d2 + e // 2, QS + 4 * d2 + e // 2]
            for k, sr in enumerate(srcs):
                if e % 2 == 0:
                    A("v_lshlrev_b32 v%d, 16, v%d" % (T + k, sr))
                else:
                    A("v_and_b32 v%d, s35, v%d" % (T + k, sr))
            A("v_mul_f32 v%d, v%d, v%d" % (T + 2, T + 2, T))
            A("v_mul_f32 v%d, v%d, v%d" % (T + 4, T + 4, T + 1))
            A("v_fma_f32 v%d, -v%d, v%d, v%d" % (T + 8 + e, T + 1, T + 3, T + 2))
            A("v_fma_f32 v%d, v%d, v%d, v%d" % (T + 16 + e, T, T + 5, T + 4))
        for k in range(4):
            A("v_cvt_pk_bf16_f32 v%d, v%d, v%d" % (T + 24 + k, T + 8 + 2 * k, T + 9 + 2 * k))
            A("v_cvt_pk_bf16_f32 v%d, v%d, v%d" % (T + 28 + k, T + 16 + 2 * k, T + 17 + 2 * k))
        A("ds_write_b128 v10, %s offset:%d" % (vr(T + 24), LDS_Q + ds * 1024))
        A("ds_write_b128 v10, %s offset:%d" % (vr(T + 28), LDS_Q + d2 * 1024))
        A("s_nop 1")
    for r in range(4):
        A("v_mov_b32 v%d, 0x3f803f80" % (ONES + r))
    for r in range(16):
        A("v_mov_b32 v%d, 0" % (NEGM + r))
    A("s_waitcnt lgkmcnt(0)")
    A("s_barrier")
    for ds in range(8):
        for qb in range(4):
            A("ds_read_b128 %s, v1 offset:%d" % (ar(AQ + 32 * qb + 4 * ds), LDS_Q + qb * 8192 + ds * 1024))
        if ds % 2 == 1:
            A("s_waitcnt lgkmcnt(4)")
    A.label("L_main")
    stamp(A, P, 2)
    vq_main = list(A.vq)
    assert vq_main == [("K", 0, i) for i in range(16)]
    for r in range(16):
        A("v_mov_b32 v%d, 0" % (LACC + r))
    for r in range(64):
        A("v_mov_b32 v%d, 0" % (OACC + r))
    A("s_waitcnt lgkmcnt(0)")
    e0 = [s for _, s in e_ops(0)]
    e1 = [s for _, s in e_ops(1)]
    slotsA = [m for m in range(36, 64)]
    phase_A(A, P, 0, True, None, spread(e0, slotsA))
    for s in adv(A, 28, 0):
        A(s)
    for i in range(16):
        v_load(A, i, 0)
    for s in adv(A, 29, 0):
        A(s)
    for s in e1:
        A(s)
    A("s_nop 1")
    for s in pwrite_ops(0):
        A(s)
    A("s_waitcnt lgkmcnt(0)")
    A("s_barrier")
    stamp(A, P, 3)
    A("s_mov_b32 s27, 7")
    A.raw(".p2align 6")
    A.label("L_loop")
    q0 = [(k, s, i) for (k, s, i) in A.vq]
    body(A, P, 0, True)
    body(A, P, 1, True)
    assert [(k, s - 2, i) for (k, s, i) in A.vq] == q0, (A.vq, q0)
    A("s_sub_u32 s27, s27, 1")
    A("s_cmp_lg_u32 s27, 0")
    A("s_cbranch_scc1 L_loop")
    A.vq = [(k, s + 12, i) for (k, s, i) in A.vq]
    stamp(A, P, 4)
    body(A, P, 14, False)
    for ks in range(4):
        for qb in range(4):
            A("ds_read_b128 %s, v1 offset:%d" % (vr(PIN + 16 * ks + 4 * qb), LDS_P + 16384 + ks * 4096 + qb * 1024))
        if ks == 2:
            A("s_waitcnt lgkmcnt(4)")
    A("v_and_b32 v3, 15, v0")
    A("v_lshlrev_b32 v8, 4, v3")
    A("s_lshl_b32 s31, s24, 2")
    A("v_add_u32 v9, s31, v8")
    for qb in range(4):
        A("ds_write_b32 v9, v%d offset:%d" % (LACC + 4 * qb, LDS_L + qb * 256))
    phase_B(A, P, 15, False, {})
    assert not A.vq
    stamp(A, P, 5)
    A("s_barrier")
    for qb in range(4):
        A("ds_read_b128 %s, v8 offset:%d" % (vr(T + 4 * qb), LDS_L + qb * 256))
    A("v_lshrrev_b32 v9, 4, v0")
    A("s_lshl_b32 s30, s26, 6")
    A("s_lshl_b32 s31, s25, 11")
    A("s_add_u32 s30, s30, s31")
    A("v_add_u32 v10, s30, v3")
    A("v_lshlrev_b32 v10, 9, v10")
    A("v_lshl_add_u32 v10, v9, 5, v10")
    A("s_lshl_b32 s31, s24, 7")
    A("v_add_u32 v10, s31, v10")
    A("s_waitcnt lgkmcnt(0)")
    for qb in range(4):
        A("v_add_f32 v%d, v%d, v%d" % (T + 4 * qb, T + 4 * qb, T + 4 * qb + 1))
        A("v_add_f32 v%d, v%d, v%d" % (T + 4 * qb + 2, T + 4 * qb + 2, T + 4 * qb + 3))
    for qb in range(4):
        A("v_add_f32 v%d, v%d, v%d" % (T + 4 * qb, T + 4 * qb, T + 4 * qb + 2))
    A("v_min3_f32 v%d, v%d, v%d, v%d" % (T + 1, T, T + 4, T + 8))
    A("v_max3_f32 v%d, v%d, v%d, v%d" % (T + 2, T, T + 4, T + 8))
    A("v_min_f32 v%d, v%d, v%d" % (T + 1, T + 1, T + 12))
    A("v_max_f32 v%d, v%d, v%d" % (T + 2, T + 2, T + 12))
    A("v_cmp_gt_f32 vcc, 0x%x, v%d" % (f2u(2.0 ** -40), T + 1))
    A("s_nop 3")
    A("s_mov_b64 s[38:39], vcc")
    A("v_cmp_lt_f32 vcc, 0x%x, v%d" % (f2u(2.0 ** 40), T + 2))
    A("s_nop 3")
    A("s_or_b64 s[38:39], vcc, s[38:39]")
    A("s_cselect_b32 s30, 1, 0")
    A("s_cmp_lt_u32 s34, s30")
    A("s_cbranch_scc1 L_fallback")
    for qb in range(4):
        A("v_rcp_f32 v%d, v%d" % (T + 4 * qb, T + 4 * qb))
    A("s_nop 0")
    for qb in range(4):
        R = T + 16 + 8 * (qb % 2)
        for f in range(4):
            for r in range(4):
                x = OACC + 16 * f + 4 * qb + r
                A("v_mul_f32 v%d, v%d, v%d" % (x, x, T + 4 * qb))
        for r in range(4):
            for h in range(2):
                A("v_cvt_pk_bf16_f32 v%d, v%d, v%d" % (R + 2 * r + h, OACC + 16 * (2 * h) + 4 * qb + r, OACC + 16 * (2 * h + 1) + 4 * qb + r))
        A("s_mov_b32 s31, %d" % (qb * 8192))
        A.vm("buffer_store_dwordx4 %s, v10, s[20:23], s31 offen%s" % (vr(R), P.get("nto", "")), ("o", qb, 0))
        A.vm("buffer_store_dwordx4 %s, v10, s[20:23], s31 offen offset:16%s" % (vr(R + 4), P.get("nto", "")), ("o", qb, 1))
    stamp(A, P, 6)
    stamp_flush(A, P, 8, 0, 24)
    A.label("L_at_done")
    A("s_endpgm")
    A.vq = []

    A.label("L_fallback")
    A("s_mov_b32 s34, 1")
    MX = T
    for qb in range(4):
        A("v_mov_b32 v%d, 0xff800000" % (MX + qb))
    A("s_mov_b32 s28, 0")
    A("s_mov_b32 s27, 16")
    A.label("L_fb_loop")
    for i in range(16):
        k_load(A, i, 0)
    A.wait_vm_all()
    for g in range(16):
        a, ds = g // 8, g % 8
        for qb in range(4):
            S = (S0 if a == 0 else S1) + 4 * qb
            A("%s %s, %s, %s, %s" % (MF, vr(S), ar(AK + 4 * g), ar(AQ + 32 * qb + 4 * ds), "0" if ds == 0 else vr(S)))
    A("s_nop 15")
    for qb in range(4):
        for S in (S0, S1):
            b = S + 4 * qb
            A("v_max3_f32 v%d, v%d, v%d, v%d" % (MX + qb, MX + qb, b, b + 1))
            A("v_max3_f32 v%d, v%d, v%d, v%d" % (MX + qb, MX + qb, b + 2, b + 3))
    A("s_add_u32 s28, s28, 0x20000")
    A("s_sub_u32 s27, s27, 1")
    A("s_cmp_lg_u32 s27, 0")
    A("s_cbranch_scc1 L_fb_loop")
    A("v_and_b32 v3, 15, v0")
    A("v_lshrrev_b32 v9, 4, v0")
    A("v_lshlrev_b32 v8, 6, v3")
    A("s_lshl_b32 s31, s24, 4")
    A("v_lshl_add_u32 v9, v9, 2, s31")
    A("v_add_u32 v9, v9, v8")
    for qb in range(4):
        A("ds_write_b32 v9, v%d offset:%d" % (MX + qb, LDS_M + qb * 1024))
    A("s_waitcnt lgkmcnt(0)")
    A("s_barrier")
    for qb in range(4):
        for k in range(4):
            A("ds_read_b128 %s, v8 offset:%d" % (vr(PIN + 4 * k), LDS_M + qb * 1024 + 16 * k))
        A("s_waitcnt lgkmcnt(0)")
        A("v_max3_f32 v%d, v%d, v%d, v%d" % (MX, PIN, PIN + 1, PIN + 2))
        for k in range(3, 15, 2):
            A("v_max3_f32 v%d, v%d, v%d, v%d" % (MX, MX, PIN + k, PIN + k + 1))
        A("v_max_f32 v%d, v%d, v%d" % (MX, MX, PIN + 15))
        for r in range(4):
            A("v_sub_f32 v%d, 0, v%d" % (NEGM + 4 * qb + r, MX))
    for r in range(4):
        A("v_mov_b32 v%d, 0x3f803f80" % (ONES + r))
    A("s_mov_b32 s28, s33")
    A("s_add_u32 s29, s33, 0x4000")
    for i in range(16):
        k_load(A, i, 0)
    for s in adv(A, 28, 0):
        A(s)
    assert A.vq == vq_main
    A("s_branch L_main")
    A.vq = []


def gen(P):
    A = Asm()
    pre, att = "kvq_pre_kernel", NAME + "_kernel"
    A.raw(HEADER.rstrip("\n"))
    A.raw("; @launch kernel=%s grid=(512,1,1) block=(256,1,1) lds=0" % pre)
    A.raw("; @launch kernel=%s grid=(256,1,1) block=(256,1,1) lds=%d" % (att, LDS_TOTAL))
    A.raw('.amdgcn_target "amdgcn-amd-amdhsa--gfx950"')
    A.raw(".text")
    gen_pre(A, pre, P)
    gen_attn(A, att, P)
    A.raw('.section .rodata,"a"')
    A.raw(".p2align 6")
    kdesc(A, pre, 160, 160)
    A.raw(".p2align 6")
    kdesc(A, att, 512, 256)
    return A.text()


if __name__ == "__main__":
    P = eval(sys.argv[2]) if len(sys.argv) > 2 else {}
    out = sys.argv[1] if len(sys.argv) > 1 else "cdna_kernels/%s.s" % NAME
    open(out, "w").write(gen(P))
```
